```python
import torch

def _softmax(x, axis=-1):
    return torch.softmax(x, dim=axis)
def _gelu(x):
    return torch.nn.functional.gelu(x, approximate="tanh")
def _silu(x):
    return torch.nn.functional.silu(x)
def _sigmoid(x):
    return torch.sigmoid(x)
def _layernorm(x, axis=-1, eps=1e-5):
    m = x.mean(dim=axis, keepdim=True)
    v = x.var(dim=axis, keepdim=True, unbiased=False)
    return (x - m) / torch.sqrt(v + eps)
def _scatter_add(tgt, idx, src, axis=0):
    return tgt.clone().index_add_(axis, idx, src)
def _segment_sum(src, seg, n):
    out = torch.zeros((n,) + src.shape[1:], dtype=src.dtype)
    return out.index_add_(0, seg, src)
def _pad(x, pw):
    flat = tuple(v for pair in reversed(pw) for v in pair)
    return torch.nn.functional.pad(x, flat)

kernel_name = 'recurrent_scan__mha_block__glu_gated_reglu__prompt'

def setup_inputs():

    _w = (lambda a: (lambda t: t.to(torch.bfloat16) if t.is_floating_point() else t)(torch.as_tensor(a)))
    def _A_setup():
        B, S, D, H = 1, 2048, 1024, 32
        return {
            "x": _w((lambda *s: torch.randn(*s, dtype=torch.bfloat16) * 0.05)(B, S, D)),
            "wqkv": _w((lambda *s: torch.randn(*s, dtype=torch.bfloat16) * 0.2)(D, 3 * D)),
            "wo": _w((lambda *s: torch.randn(*s, dtype=torch.bfloat16) * 0.2)(D, D)),
        }
    _A_in = _A_setup()

    def _B_setup():
        B, S, D, F = 1, 2048, 1024, 3584
        return {
            "x": _w((lambda *s: torch.randn(*s, dtype=torch.bfloat16) * 0.05)(B, S, D)),
            "W_gate": _w((lambda *s: torch.randn(*s, dtype=torch.bfloat16) * 0.1)(D, F) * (2.0 / D) ** 0.5),
            "W_up": _w((lambda *s: torch.randn(*s, dtype=torch.bfloat16) * 0.1)(D, F) * (2.0 / D) ** 0.5),
            "W_down": _w((lambda *s: torch.randn(*s, dtype=torch.bfloat16) * 0.1)(F, D) * (1.0 / F) ** 0.5),
        }
    _B_in = _B_setup()

    return {
        "A_x": _A_in["x"],
        "A_wqkv": _A_in["wqkv"],
        "A_wo": _A_in["wo"],
        "B_x": _B_in["x"],
        "B_W_gate": _B_in["W_gate"],
        "B_W_up": _B_in["W_up"],
        "B_W_down": _B_in["W_down"],
    }

def reference(A_x, A_wqkv, A_wo, B_x, B_W_gate, B_W_up, B_W_down):
    def _A_ref(x, wqkv, wo):
        B, S, D = x.shape
        H = 32
        Dh = D // H
        qkv = (lambda x, *d: x.permute(*d))((x @ wqkv).reshape(B, S, 3, H, Dh), 2, 0, 3, 1, 4)
        q, k, v = qkv[0], qkv[1], qkv[2]
        scores = torch.einsum("bhqd,bhkd->bhqk", q, k) * (Dh ** -0.5)
        p = _softmax(scores, axis=-1)
        o = torch.einsum("bhqk,bhkd->bhqd", p, v)
        return (lambda x, *d: x.permute(*d))(o, 0, 2, 1, 3).reshape(B, S, D) @ wo

    def _B_ref(x, W_gate, W_up, W_down):
        gate = torch.einsum("bsd,df->bsf", x, W_gate)
        up = torch.einsum("bsd,df->bsf", x, W_up)
        gate = gate * (lambda x, dt: x.to(dt))(gate > 0, gate.dtype)
        h = gate * up
        return torch.einsum("bsf,fd->bsd", h, W_down)

    x = A_x
    xn = _layernorm(x, axis=-1)
    s = _A_ref(xn, A_wqkv, A_wo)
    g = _silu(_B_ref(xn, B_W_gate, B_W_up, B_W_down))
    return x + s * g
```

```python
class Wait:
    def __init__(self, kind, n):
        self.kind, self.n = kind, n

    def text(self):
        return None if self.n is None else f"s_waitcnt {self.kind}({self.n})"


class Queue:
    def __init__(self, kind, maxn):
        self.kind, self.maxn, self.q = kind, maxn, []

    def issue(self, tag):
        self.q.append(tag)

    def wait(self, tag):
        idx = [i for i, t in enumerate(self.q) if t == tag]
        if not idx:
            return Wait(self.kind, None)
        n = len(self.q) - 1 - idx[-1]
        n = min(n, self.maxn)
        self.q = self.q[len(self.q) - n:] if n else []
        return Wait(self.kind, n)

    def drain(self):
        self.q = []
        return Wait(self.kind, 0)


class Block(list):
    def __call__(self, s):
        if isinstance(s, (list, tuple)):
            for x in s:
                self(x)
        else:
            self.append(s)

    def label(self, name):
        self.append(name + ":")


def merge_iterations(iters):
    body = Block()
    first = iters[0]
    for other in iters[1:]:
        assert len(other) == len(first), (len(other), len(first))
    for pos, item in enumerate(first):
        if isinstance(item, Wait):
            ns = []
            for it in iters:
                assert isinstance(it[pos], Wait) and it[pos].kind == item.kind
                if it[pos].n is not None:
                    ns.append(it[pos].n)
            body.append(Wait(item.kind, min(ns) if ns else None))
        else:
            for it in iters:
                assert it[pos] == item, (pos, it[pos], item)
            body.append(item)
    return body


def render(block):
    out = []
    for item in block:
        if isinstance(item, Wait):
            t = item.text()
            if t:
                out.append("    " + t)
        elif item.endswith(":"):
            out.append(item)
        else:
            out.append("    " + item)
    return "\n".join(out) + "\n"


def vr(base, n=1):
    return f"v{base}" if n == 1 else f"v[{base}:{base + n - 1}]"


def ar(base, n=1):
    return f"a{base}" if n == 1 else f"a[{base}:{base + n - 1}]"


def sr(base, n=1):
    return f"s{base}" if n == 1 else f"s[{base}:{base + n - 1}]"


def srd(b, s, lo, nbytes, add=0):
    if add:
        b(f"s_add_u32 s{s}, s{lo}, {add}")
        b(f"s_addc_u32 s{s + 1}, s{lo + 1}, 0")
        b(f"s_and_b32 s{s + 1}, s{s + 1}, 0xffff")
    else:
        b(f"s_mov_b32 s{s}, s{lo}")
        b(f"s_and_b32 s{s + 1}, s{lo + 1}, 0xffff")
    b(f"s_mov_b32 s{s + 2}, {nbytes}")
    b(f"s_mov_b32 s{s + 3}, 0x20000")


def kernel_text(name, body, nvgpr, accum, nsgpr=96):
    return (f".text\n.globl {name}\n.p2align 8\n.type {name},@function\n{name}:\n" + render(body) +
            f".section .rodata,\"a\"\n.p2align 6\n.amdhsa_kernel {name}\n"
            f"  .amdhsa_next_free_vgpr {nvgpr}\n  .amdhsa_next_free_sgpr {nsgpr}\n  .amdhsa_accum_offset {accum}\n"
            f"  .amdhsa_group_segment_fixed_size 0\n  .amdhsa_kernarg_size 80\n  .amdhsa_user_sgpr_count 2\n"
            f"  .amdhsa_user_sgpr_kernarg_segment_ptr 1\n  .amdhsa_system_sgpr_workgroup_id_x 1\n"
            f".end_amdhsa_kernel\n")


def interleave(primary, fillers):
    out = Block()
    fillers = list(fillers)
    for ins, n in primary:
        out(ins)
        for _ in range(n):
            if fillers:
                out(fillers.pop(0))
    for f in fillers:
        out(f)
    return out
```

```python
from asmlib import *
from layout import *

BIAS = 64.0
THR = 2.0 ** 80

V_L16, V_LR = 2, 3
V_S = {"a": 8, "b": 24}
V_NM = {"a": 40, "b": 56}
V_P = {"a": 72, "b": 80}
V_E = 88
V_L = {"a": 92, "b": 100}
V_X = 108
A_O = {"a": 0, "b": 16}
A_Q = {"a": 32, "b": 40}
A_K, A_V, A_ONE, A_PRE = 48, 56, 64, 68

S_QKV, S_O = 8, 12
S_W, S_H, S_MT, S_OK, S_OV, S_DSLOT, S_RSLOT, S_CNT, S_THR, S_MK, S_OO, S_BIAS = 16, 17, 18, 19, 20, 21, 22, 23, 24, 25, 26, 28


def m32(d, a, bb, c):
    return f"v_mfma_f32_32x32x16_bf16 {d}, {a}, {bb}, {c}"


def m16(d, a, bb, c):
    return f"v_mfma_f32_16x16x32_bf16 {d}, {a}, {bb}, {c}"


def s_mfma(y, s, c0=None):
    d = vr(V_S[y], 16)
    c = d if s else (c0 if c0 is not None else vr(V_NM[y], 16))
    return m32(d, ar(A_K + 4 * s, 4), ar(A_Q[y] + 4 * s, 4), c)


def pv_mfma(y, s):
    return m32(ar(A_O[y], 16), ar(A_V + 4 * s, 4), vr(V_P[y] + 4 * s, 4), ar(A_O[y], 16))


def l_mfma(y, par, s):
    new, old = V_L[y] + 4 * par, V_L[y] + 4 * (par ^ 1)
    return m16(vr(new, 4), ar(A_ONE, 4), vr(V_P[y] + 4 * s, 4), vr(new if s else old, 4))


def slow_path(b, lbl, y, par):
    S, NM, P, O = V_S[y], V_NM[y], V_P[y], A_O[y]
    old = V_L[y] + 4 * (par ^ 1)
    t0, t1, dl, n = V_X, V_X + 1, V_X + 2, V_X + 3
    e = V_X + 4
    b.label(lbl)
    b(f"v_max3_f32 v{t0}, v{S}, v{S + 1}, v{S + 2}")
    for i in range(3, 15, 2):
        b(f"v_max3_f32 v{t0}, v{t0}, v{S + i}, v{S + i + 1}")
    b(f"v_max_f32 v{t0}, v{t0}, v{S + 15}")
    b(f"v_log_f32 v{dl}, v{old}")
    b(f"v_mov_b32 v{t1}, v{t0}")
    b("s_nop 1")
    b(f"v_permlane32_swap_b32 v{t0}, v{t1}")
    b(f"v_max3_f32 v{t0}, v{t0}, v{t1}, v{dl}")
    b(f"v_add_f32 v{t0}, s{S_BIAS}, v{t0}")
    b(f"v_max_f32 v{t0}, 0, v{t0}")
    b(f"v_ceil_f32 v{dl}, v{t0}")
    b(f"v_cvt_i32_f32 v{n}, v{dl}")
    b(f"v_sub_u32 v{n}, 0, v{n}")
    for i in range(16):
        b(f"v_sub_f32 v{NM + i}, v{NM + i}, v{dl}")
    for i in range(16):
        b(f"v_accvgpr_read_b32 v{t0}, a{O + i}")
        b(f"v_sub_f32 v{S + i}, v{S + i}, v{dl}")
        b(f"v_ldexp_f32 v{t0}, v{t0}, v{n}")
        b(f"v_accvgpr_write_b32 a{O + i}, v{t0}")
    for i in range(4):
        b(f"v_ldexp_f32 v{old + i}, v{old + i}, v{n}")
    for i in range(0, 16, 4):
        for k in range(4):
            b(f"v_exp_f32 v{e + k}, v{S + i + k}")
        b(f"v_cvt_pk_bf16_f32 v{P + i // 2}, v{e}, v{e + 1}")
        b(f"v_cvt_pk_bf16_f32 v{P + i // 2 + 1}, v{e + 2}, v{e + 3}")
    b("s_nop 1")
    b(l_mfma(y, par, 0))
    b(l_mfma(y, par, 1))
    b(f"s_branch {lbl}_ret")


def block(o, name, x, par_y, tag, slots, pre_s=None, pre_pv=None):
    y = "b" if x == "a" else "a"
    S, P = V_S[x], V_P[x]
    e = lambda i: f"v_exp_f32 v{V_E + i % 4}, v{S + i}"
    c = lambda i: f"v_cvt_pk_bf16_f32 v{P + i}, v{V_E + (2 * i) % 4}, v{V_E + (2 * i + 1) % 4}"
    lbl = f"{name}_slow_{tag}"
    o([e(0), l_mfma(y, par_y, 0), e(1), l_mfma(y, par_y, 1), e(2), c(0), e(3), e(4), c(1), e(5), e(6), c(2)])
    o(f"v_cmp_nge_f32 vcc, s{S_THR}, v{V_L[y] + 4 * par_y}")
    o(e(7))
    o(f"s_cbranch_vccnz {lbl}")
    o.label(f"{lbl}_ret")
    if pre_s:
        pre_s()
    o([s_mfma(y, 0), e(8), c(3), e(9)])
    slots[0]()
    o([s_mfma(y, 1), e(10), c(4), e(11)])
    slots[1]()
    if pre_pv:
        pre_pv()
    o([pv_mfma(y, 0), e(12), c(5), e(13)])
    slots[2]()
    o([pv_mfma(y, 1), e(14), c(6), e(15)])
    slots[3]()
    o(c(7))
    return (lbl, y, par_y)


def gen(name, opt):
    npre = opt.get("at_npre", 4)
    vm, lg = Queue("vmcnt", 63), Queue("lgkmcnt", 15)
    b = Block()
    b("s_cmp_ge_u32 s2, 256")
    b(f"s_cbranch_scc1 {name}_done")
    b(f"s_load_dwordx2 s[6:7], s[0:1], {KA_WS}")
    b("v_lshrrev_b32 v4, 6, v0")
    b("v_and_b32 v1, 63, v0")
    b(f"s_and_b32 s{S_H}, s2, 7")
    b(f"v_readfirstlane_b32 s{S_W}, v4")
    b(f"s_lshl_b32 s{S_H}, s{S_H}, 2")
    b("s_bfe_u32 s3, s2, 0x20003")
    b(f"s_add_u32 s{S_H}, s{S_H}, s3")
    b(f"s_lshr_b32 s{S_MT}, s2, 5")
    b(f"s_lshl_b32 s{S_MT}, s{S_MT}, 3")
    b(f"s_lshl_b32 s3, s{S_W}, 1")
    b(f"s_add_u32 s{S_MT}, s{S_MT}, s3")
    b(f"v_lshlrev_b32 v{V_L16}, 4, v1")
    b(f"s_lshl_b32 s30, s{S_H}, 17")
    b(f"s_lshl_b32 s3, s{S_MT}, 11")
    b("s_add_u32 s31, s30, s3")
    b(f"s_add_u32 s32, s30, {32 << 17}")
    b("s_add_u32 s33, s32, 4096")
    b(f"s_lshl_b32 s{S_MK}, s{S_W}, 10")
    b(f"s_add_u32 s{S_OK}, s32, s{S_MK}")
    b(f"s_add_u32 s{S_OV}, s{S_OK}, {32 << 17}")
    b(f"s_add_u32 s{S_OK}, s{S_OK}, 2048")
    b(f"s_mov_b32 s{S_DSLOT}, s{S_MK}")
    b("s_waitcnt lgkmcnt(0)")
    srd(b, S_QKV, 6, 12 << 20, WS_QKV)
    q = f"s[{S_QKV}:{S_QKV + 3}]"
    for i, y in enumerate("ab"):
        for s in range(2):
            b(f"buffer_load_dwordx4 {ar(A_Q[y] + 4 * s, 4)}, v{V_L16}, {q}, s31 offen offset:{2048 * i + 1024 * s}")
            vm.issue("Q")
    kpre = [A_K] + [A_PRE + 8 * i for i in range(npre - 1)]
    for t in range(npre):
        for s in range(2):
            if t and t % 2 == 0 and s == 0 and t > 2:
                b("s_add_u32 s33, s33, 4096")
            so = "s32" if t < 2 else "s33"
            b(f"buffer_load_dwordx4 {ar(kpre[t] + 4 * s, 4)}, v{V_L16}, {q}, {so} offen offset:{2048 * (t % 2) + 1024 * s}")
            vm.issue(("K", t))

    def dma_items(o, it):
        o(f"s_mov_b32 m0, s{S_DSLOT}")
        o(f"s_add_u32 s{S_DSLOT}, s{S_DSLOT}, 4096")
        o(f"buffer_load_dwordx4 v{V_L16}, {q}, s{S_OK} offen lds")
        vm.issue(("D", it))
        o(f"s_mov_b32 m0, s{S_DSLOT}")
        o(f"s_add_u32 s{S_DSLOT}, s{S_DSLOT}, 4096")
        o(f"buffer_load_dwordx4 v{V_L16}, {q}, s{S_OV} offen lds")
        vm.issue(("D", it))
        o(f"s_and_b32 s{S_DSLOT}, s{S_DSLOT}, 0x7fff")
        o(f"s_add_u32 s{S_OK}, s{S_OK}, 4096")
        o(f"s_add_u32 s{S_OV}, s{S_OV}, 4096")

    for it in range(3):
        dma_items(b, it)
    srd(b, S_O, 6, 4 << 20, WS_O)
    b(f"s_lshl_b32 s{S_OO}, s{S_MT}, 16")
    b(f"s_lshl_b32 s3, s{S_H}, 11")
    b(f"s_add_u32 s{S_OO}, s{S_OO}, s3")
    b(f"s_add_u32 s{S_OO + 1}, s{S_OO}, 65536")
    b(f"s_mov_b32 s{S_THR}, {f32(THR)}")
    b(f"s_mov_b32 s{S_BIAS}, {f32(BIAS)}")
    b(f"s_mov_b32 s{S_RSLOT}, 0")
    b(f"s_mov_b32 s{S_CNT}, 32")
    b("v_lshrrev_b32 v4, 2, v1")
    b("v_lshrrev_b32 v5, 4, v1")
    b("v_xor_b32 v4, v4, v5")
    b("v_and_b32 v4, 1, v4")
    b("v_cmp_eq_u32 vcc, 0, v4")
    b("v_mov_b32 v5, 0x3f803f80")
    b("s_nop 0")
    b("v_cndmask_b32 v5, 0, v5, vcc")
    for i in range(4):
        b(f"v_accvgpr_write_b32 a{A_ONE + i}, v5")
    for i in range(32):
        b(f"v_accvgpr_write_b32 a{A_O['a'] + i}, 0")
    for i in range(8):
        b(f"v_accvgpr_write_b32 a{A_V + i}, 0")
        b(f"v_mov_b32 v{V_P['b'] + i}, 0")
    for i in range(16):
        b(f"v_mov_b32 v{V_L['a'] + i}, 0")
    mx = {"a": V_X, "b": V_X + 1}
    b(f"v_mov_b32 v{mx['a']}, 0xff800000")
    b(f"v_mov_b32 v{mx['b']}, 0xff800000")

    def pre_mfma(t, y):
        d = vr(V_S[y], 16)
        return [m32(d, ar(kpre[t], 4), ar(A_Q[y], 4), "0"), m32(d, ar(kpre[t] + 4, 4), ar(A_Q[y] + 4, 4), d)]

    def pre_max(y):
        S = V_S[y]
        return [f"v_max3_f32 v{mx[y]}, v{mx[y]}, v{S + i}, v{S + i + 1}" for i in range(0, 16, 2)]

    b(vm.wait(("K", 0)))
    b(pre_mfma(0, "a"))
    for t in range(npre):
        b(pre_mfma(t, "b"))
        b("s_nop 9")
        b(pre_max("a"))
        if t + 1 < npre:
            b(vm.wait(("K", t + 1)))
            b(pre_mfma(t + 1, "a"))
        else:
            b("s_nop 1")
        b("s_nop 1")
        b(pre_max("b"))
    for y in "ab":
        b(f"v_mov_b32 v{V_X + 2}, v{mx[y]}")
        b("s_nop 1")
        b(f"v_permlane32_swap_b32 v{mx[y]}, v{V_X + 2}")
        b(f"v_max_f32 v{mx[y]}, v{mx[y]}, v{V_X + 2}")
        b(f"v_add_f32 v{mx[y]}, s{S_BIAS}, v{mx[y]}")
        for i in range(16):
            b(f"v_sub_f32 v{V_NM[y] + i}, 0, v{mx[y]}")
    b([s_mfma("a", 0), s_mfma("a", 1), "s_nop 11"])

    slows = []

    def iteration(o, it):
        nop = lambda: None

        def rd(dst, off, tag):
            def f():
                o(f"ds_read_b128 {ar(dst, 4)}, v{V_LR} offset:{off}")
                lg.issue(tag)
            return f

        def sync():
            o(vm.wait(("D", it)))
            o("s_barrier")
            o(f"v_add_u32 v{V_LR}, s{S_RSLOT}, v{V_L16}")

        def seq(*fs):
            def f():
                for g in fs:
                    g()
            return f

        def adv():
            o(f"s_add_u32 s{S_RSLOT}, s{S_RSLOT}, 8192")
            o(f"s_and_b32 s{S_RSLOT}, s{S_RSLOT}, 0x7fff")

        res = []
        for half in range(2):
            j = 2 * it + half
            k0, k1 = rd(A_K, 2048 * half, ("k", j)), rd(A_K + 4, 2048 * half + 1024, ("k", j))
            v0, v1 = rd(A_V, 4096 + 2048 * half, ("v", j)), rd(A_V + 4, 4096 + 2048 * half + 1024, ("v", j))
            res.append(block(o, name, "a", half ^ 1, f"b{half ^ 1}", [k0, k1, v0, v1], pre_s=sync if half == 0 else None))
            wk = lambda j=j: o(lg.wait(("k", j)))
            wv = lambda j=j: o(lg.wait(("v", j)))
            sl = [nop, nop, nop, lambda: o("s_nop 0")]
            if half == 0:
                sl = [lambda: dma_items(o, it + 3), nop, adv, lambda: o(f"s_sub_u32 s{S_CNT}, s{S_CNT}, 1")]
            else:
                sl = [nop, nop, nop, lambda: o(f"s_cmp_lg_u32 s{S_CNT}, 0")]
            res.append(block(o, name, "b", half, f"a{half}", sl, pre_s=wk, pre_pv=wv))
        return res

    iters = []
    for it in range(32):
        o = Block()
        slows = iteration(o, it)
        iters.append(o)
    b(".p2align 3")
    b.label(f"{name}_loop")
    b(merge_iterations(iters))
    b(f"s_cbranch_scc1 {name}_loop")
    lbl = f"{name}_slow_tail"
    b(["s_nop 0", l_mfma("b", 1, 0), l_mfma("b", 1, 1), "s_nop 7"])
    b(f"v_cmp_nge_f32 vcc, s{S_THR}, v{V_L['b'] + 4}")
    b("s_nop 0")
    b(f"s_cbranch_vccnz {lbl}")
    b.label(f"{lbl}_ret")
    b([pv_mfma("b", 0), pv_mfma("b", 1)])
    slows.append((lbl, "b", 1))
    for i, y in enumerate("ab"):
        S, P = V_S[y], V_P[y]
        if y == "b":
            b("s_nop 7")
        b(f"v_rcp_f32 v{V_X}, v{V_L[y] + 4}")
        for r in range(16):
            b(f"v_accvgpr_read_b32 v{S + r}, a{A_O[y] + r}")
        for r in range(16):
            b(f"v_mul_f32 v{S + r}, v{S + r}, v{V_X}")
        for r in range(8):
            b(f"v_cvt_pk_bf16_f32 v{P + r}, v{S + 2 * r}, v{S + 2 * r + 1}")
        for s in range(2):
            b(f"buffer_store_dwordx4 {vr(P + 4 * s, 4)}, v{V_L16}, s[{S_O}:{S_O + 3}], s{S_OO + i} offen offset:{1024 * s}")
    b.label(f"{name}_done")
    b("s_endpgm")
    for lbl, y, par in slows:
        slow_path(b, lbl, y, par)
    return kernel_text(name, b, 256, 128, 64), (256, 256, 32768)
```

```python
from asmlib import *
from layout import *

STAGE = 40960
G_OFF, U_OFF = 12288, 26624
D = 4
NA = D + 1

V_DMA, V_L16, V_LQ, V_LG0, V_LG1 = 10, 20, 21, 22, 23
V_A, V_B, V_ACC = 24, 44, 108
V_T, V_P, V_TT, V_ID = 172, 204, 220, 236

S_Q, S_G, S_U, S_X4, S_XN, S_QKV, S_H = 8, 12, 16, 20, 24, 28, 32
S_W, S_J, S_MT = 36, 37, 38
S_M0, S_DSLOT, S_OQ, S_OG, S_OB0, S_OB1, S_CNT, S_DELTA, S_RSLOT = 40, 50, 51, 52, 53, 54, 55, 56, 57
S_CSTG, S_CWRAP = 58, 59
S_SC, S_CH, S_QO, S_HO = 60, 63, 66, 70


def acc(n, mm):
    if n < 2:
        return ("v", V_ACC + 16 * (2 * n + mm))
    return ("a", 16 * (2 * (n - 2) + mm))


def accr(n, mm):
    f, r = acc(n, mm)
    return f"{f}[{r}:{r + 15}]"


def breg(q, mm):
    return V_B + 8 * (q % 8) + 4 * mm


def frag_reads(fr, ring, slot_add):
    ks, n = fr
    r = V_A + 4 * ring
    if n < 3:
        o = slot_add + 16 * ks * 192 + n * 64
        return [f"ds_read_b64_tr_b16 v[{r}:{r + 1}], v{V_LQ} offset:{o}",
                f"ds_read_b64_tr_b16 v[{r + 2}:{r + 3}], v{V_LQ} offset:{o + 768}"]
    o = slot_add + 16 * ks * 224 + (n - 3) * 32
    return [f"ds_read_b64_tr_b16 v[{r}:{r + 1}], v{V_LG0} offset:{o}",
            f"ds_read_b64_tr_b16 v[{r + 2}:{r + 3}], v{V_LG1} offset:{o}"]


def dma(i, wnt):
    s = S_Q if i < 3 else (S_G if i < 6 else (S_U if i < 9 else S_X4))
    so = S_OQ if i < 3 else S_OG
    return (f"s_add_u32 m0, s{S_M0 + i}, s{S_DSLOT}",
            f"buffer_load_dwordx4 v{V_DMA + i}, s[{s}:{s + 3}], s{so} offen lds{wnt}")


def dma_advance():
    return [f"s_add_u32 s{S_OQ}, s{S_OQ}, {64 * 6144}", f"s_add_u32 s{S_OG}, s{S_OG}, {64 * 7168}",
            f"s_add_u32 s{S_DSLOT}, s{S_DSLOT}, {STAGE}", f"s_cmp_eq_u32 s{S_DSLOT}, {4 * STAGE}",
            f"s_cselect_b32 s{S_DSLOT}, 0, s{S_DSLOT}"]


def bload(q, mm, xnt):
    r = breg(q, mm)
    return f"buffer_load_dwordx4 v[{r}:{r + 3}], v{V_L16}, s[{S_XN}:{S_XN + 3}], s{S_OB0 + mm} offen offset:{1024 * (q % 4)}{xnt}"


def epilogue_ops(name, n, mm, k, stp):
    f, r = acc(n, mm)
    T, P = V_T + 16 * k, V_P + 8 * k
    ops = []
    if n >= 3:
        for i in range(8):
            ops.append(f"v_accvgpr_read_b32 v{T + i}, a{r + i}")
            ops.append(f"v_accvgpr_read_b32 v{T + 8 + i}, a{r + 8 + i}")
            ops.append(f"v_max_f32 v{T + i}, 0, v{T + i}")
            ops.append(f"v_mul_f32 v{T + i}, v{T + i}, v{T + 8 + i}")
            if i & 1:
                ops.append(f"v_cvt_pk_bf16_f32 v{P + i // 2}, v{T + i - 1}, v{T + i}")
        t = n - 3
        ops.append(f"buffer_store_dwordx4 v[{P}:{P + 3}], v{V_L16}, s[{S_H}:{S_H + 3}], s{S_HO + 2 * mm + t // 4} offen offset:{1024 * (t % 4)}{stp}")
        return ops
    for i in range(16):
        if f == "a":
            ops.append(f"v_accvgpr_read_b32 v{T + i}, a{r + i}")
            ops.append(f"v_mul_f32 v{T + i}, s{S_SC + n}, v{T + i}")
        else:
            ops.append(f"v_mul_f32 v{T + i}, s{S_SC + n}, v{r + i}")
        if i & 1:
            ops.append(f"v_cvt_pk_bf16_f32 v{P + i // 2}, v{T + i - 1}, v{T + i}")
    lbl = f"{name}_nov{n}{mm}"
    blk = [f"s_cmp_ge_u32 s{S_CH + n}, 64", f"s_cbranch_scc0 {lbl}", "s_nop 1",
           f"v_mfma_f32_32x32x16_bf16 v[{V_TT}:{V_TT + 15}], v[{P}:{P + 3}], v[{V_ID}:{V_ID + 3}], 0",
           f"v_mfma_f32_32x32x16_bf16 v[{V_TT}:{V_TT + 15}], v[{P + 4}:{P + 7}], v[{V_ID + 4}:{V_ID + 7}], v[{V_TT}:{V_TT + 15}]",
           "s_nop 12"]
    blk += [f"v_cvt_pk_bf16_f32 v{P + i}, v{V_TT + 2 * i}, v{V_TT + 2 * i + 1}" for i in range(8)]
    blk += [lbl + ":"]
    ops.append(blk)
    for s in range(2):
        ops.append(f"buffer_store_dwordx4 v[{P + 4 * s}:{P + 4 * s + 3}], v{V_L16}, s[{S_QKV}:{S_QKV + 3}], s{S_QO + n} offen offset:{2048 * mm + 1024 * s}{stp}")
    return ops


def gen(name, opt):
    wnt = " nt" if opt.get("g1_wnt") else ""
    xnt = " nt" if opt.get("g1_xnt") else ""
    stp = opt.get("g1_store", "")
    stp = (" " + stp) if stp else ""
    nfill = opt.get("g1_nfill", 6)
    vm, lg = Queue("vmcnt", 63), Queue("lgkmcnt", 15)
    b = Block()
    b("s_cmp_ge_u32 s2, 256")
    b(f"s_cbranch_scc1 {name}_done")
    b(f"s_load_dwordx2 s[4:5], s[0:1], {KA_WQKV}")
    b(f"s_load_dwordx4 s[76:79], s[0:1], {KA_GATE}")
    b(f"s_load_dwordx2 s[6:7], s[0:1], {KA_WS}")
    b("v_lshrrev_b32 v2, 6, v0")
    b("v_and_b32 v1, 63, v0")
    b(f"s_and_b32 s{S_J}, s2, 7")
    b(f"v_readfirstlane_b32 s{S_W}, v2")
    b(f"s_lshl_b32 s{S_J}, s{S_J}, 2")
    b("s_bfe_u32 s3, s2, 0x20003")
    b(f"s_add_u32 s{S_J}, s{S_J}, s3")
    b(f"s_lshr_b32 s{S_MT}, s2, 5")
    b(f"s_lshl_b32 s{S_MT}, s{S_MT}, 3")
    b(f"s_lshl_b32 s3, s{S_W}, 1")
    b(f"s_add_u32 s{S_MT}, s{S_MT}, s3")
    b(f"v_lshlrev_b32 v{V_L16}, 4, v1")
    b(f"s_mul_i32 s80, s{S_W}, 3")
    b(f"s_and_b32 s81, s{S_W}, 1")
    b("s_add_u32 s81, s81, 12")
    b(f"s_mul_i32 s82, s{S_J}, 192")
    b(f"s_mul_i32 s83, s{S_J}, 224")
    b(f"s_lshr_b32 s84, s{S_W}, 1")
    for i in range(10):
        kind = "q" if i < 3 else ("g" if i < 6 else ("u" if i < 9 else "x"))
        upr, stride, col = (12, 6144, 82) if kind == "q" else (14, 7168, 83)
        if kind == "x":
            b("s_mov_b32 s3, s81")
        else:
            b(f"s_add_u32 s3, s80, {i % 3}")
        b(f"s_lshl_b32 s{S_M0 + i}, s3, 10")
        b("s_lshl_b32 s3, s3, 6")
        b("v_add_u32 v3, s3, v1")
        b(f"v_mul_u32_u24 v4, {magic(upr, 896)}, v3")
        b("v_lshrrev_b32 v4, 16, v4")
        b(f"v_mul_u32_u24 v5, {upr}, v4")
        b("v_sub_u32 v5, v3, v5")
        if kind == "u":
            b("v_xor_b32 v4, 4, v4")
            b(f"s_add_u32 s{S_M0 + i}, s{S_M0 + i}, {U_OFF}")
        elif kind == "g":
            b(f"s_add_u32 s{S_M0 + i}, s{S_M0 + i}, {G_OFF}")
        elif kind == "x":
            b("s_lshl_b32 s3, s84, 2")
            b("v_xor_b32 v4, s3, v4")
            b(f"s_mul_i32 s3, s84, {U_OFF - G_OFF}")
            b(f"s_add_u32 s3, s3, {G_OFF}")
            b(f"s_add_u32 s{S_M0 + i}, s{S_M0 + i}, s3")
        b(f"v_mul_u32_u24 v4, {stride}, v4")
        b("v_lshl_add_u32 v4, v5, 4, v4")
        b(f"v_add_u32 v{V_DMA + i}, s{col}, v4")
    b("s_waitcnt lgkmcnt(0)")
    srd(b, S_Q, 4, 6 << 20)
    srd(b, S_G, 76, 7 << 20)
    srd(b, S_U, 78, 7 << 20)
    b(f"s_cmp_lt_u32 s{S_W}, 2")
    b(f"s_cselect_b32 s{S_X4}, s{S_G}, s{S_U}")
    b(f"s_cselect_b32 s{S_X4 + 1}, s{S_G + 1}, s{S_U + 1}")
    b(f"s_mov_b32 s{S_X4 + 2}, {7 << 20}")
    b(f"s_mov_b32 s{S_X4 + 3}, 0x20000")
    srd(b, S_XN, 6, 4 << 20, WS_XN)
    b(f"s_mov_b32 s{S_DSLOT}, 0")
    b(f"s_mov_b32 s{S_OQ}, 0")
    b(f"s_mov_b32 s{S_OG}, 0")
    b(f"s_lshl_b32 s{S_OB0}, s{S_MT}, 16")
    b(f"s_add_u32 s{S_OB1}, s{S_OB0}, 65536")

    def issue_dma_stage(st):
        for i in range(10):
            m, l = dma(i, wnt)
            b(m)
            b("s_nop 0")
            b(l)
            vm.issue(("D", st))
        b(dma_advance())

    def issue_b(q):
        for mm in range(2):
            b(bload(q, mm, xnt))
            vm.issue(("B", q))
        if q % 4 == 3:
            b(f"s_add_u32 s{S_OB0}, s{S_OB0}, 4096")
            b(f"s_add_u32 s{S_OB1}, s{S_OB1}, 4096")

    issue_dma_stage(0)
    for q in range(4):
        issue_b(q)
    issue_dma_stage(1)
    for q in range(4, 8):
        issue_b(q)

    srd(b, S_QKV, 6, 12 << 20, WS_QKV)
    srd(b, S_H, 6, 14 << 20, WS_H)
    b(f"s_mov_b32 s{S_RSLOT}, 0")
    b(f"s_mov_b32 s{S_CSTG}, {STAGE}")
    b(f"s_mov_b32 s{S_CWRAP}, {-3 * STAGE}")
    b(f"s_mov_b32 s{S_CNT}, 7")
    b(f"s_mov_b32 s85, {f32(QSCALE)}")
    for n in range(3):
        b(f"s_mul_i32 s{S_CH + n}, s{S_J}, 3")
        b(f"s_add_u32 s{S_CH + n}, s{S_CH + n}, {n}")
        b(f"s_cmp_lt_u32 s{S_CH + n}, 32")
        b(f"s_cselect_b32 s{S_SC + n}, s85, 1.0")
        b(f"s_lshl_b32 s{S_QO + n}, s{S_CH + n}, 17")
        b(f"s_lshl_b32 s3, s{S_MT}, 11")
        b(f"s_add_u32 s{S_QO + n}, s{S_QO + n}, s3")
    b(f"s_mul_i32 s{S_HO}, s{S_MT}, 224")
    b(f"s_mul_i32 s3, s{S_J}, 7")
    b(f"s_add_u32 s{S_HO}, s{S_HO}, s3")
    b(f"s_lshl_b32 s{S_HO}, s{S_HO}, 10")
    b(f"s_add_u32 s{S_HO + 1}, s{S_HO}, 4096")
    b(f"s_add_u32 s{S_HO + 2}, s{S_HO}, {224 * 1024}")
    b(f"s_add_u32 s{S_HO + 3}, s{S_HO + 2}, 4096")
    b("v_bfe_u32 v2, v1, 2, 2")
    b("v_lshrrev_b32 v3, 5, v1")
    b("v_lshl_add_u32 v2, v3, 3, v2")
    b("v_and_b32 v4, 3, v1")
    b("v_lshlrev_b32 v4, 3, v4")
    b("v_bfe_u32 v5, v1, 4, 1")
    b("v_mul_u32_u24 v6, 192, v2")
    b("v_add_u32 v6, v6, v4")
    b(f"v_lshl_add_u32 v{V_LQ}, v5, 5, v6")
    b("v_mul_u32_u24 v6, 224, v2")
    b("v_add_u32 v6, v6, v4")
    b(f"v_mul_u32_u24 v7, {U_OFF + 896 - G_OFF}, v5")
    b("v_add_u32 v7, v7, v6")
    b(f"v_add_u32 v{V_LG0}, {G_OFF}, v7")
    b(f"v_mul_u32_u24 v7, {U_OFF - G_OFF - 896}, v5")
    b("v_add_u32 v7, v7, v6")
    b(f"v_add_u32 v{V_LG1}, {G_OFF + 896}, v7")
    b("v_and_b32 v6, 31, v1")
    b("v_lshlrev_b32 v3, 2, v3")
    b("v_sub_u32 v6, v6, v3")
    b("v_mov_b32 v7, 0x3f80")
    b("v_mov_b32 v8, 1.0")
    for s in range(2):
        for e in range(4):
            dlo = 16 * s + 8 * (e >> 1) + 2 * (e & 1)
            r = V_ID + 4 * s + e
            b(f"v_cmp_eq_u32 vcc, {dlo}, v6")
            b(f"v_cmp_eq_u32 s[86:87], {dlo + 1}, v6")
            b("s_nop 0")
            b(f"v_cndmask_b32 v{r}, 0, v7, vcc")
            b(f"v_cndmask_b32 v{r}, v{r}, v8, s[86:87]")
    for r in range(64):
        b(f"v_mov_b32 v{V_ACC + r}, 0")
    for r in range(256):
        b(f"v_accvgpr_write_b32 a{r}, 0")

    order = [(st, ks, n) for st in range(14) for ks in range(4) for n in range(10)]
    order += [(14, 0, n) for n in range(10)]
    order += [(14 + k // 4, k % 4, n) for n in range(10) for k in range(1, 8)]
    first_read = {}
    for f, (st, ks, n) in enumerate(order):
        first_read.setdefault(st, f)

    def reads(f):
        st, ks, n = order[f]
        return frag_reads((ks, n), f % NA, STAGE if st == 15 else 0)

    b(vm.wait(("D", 0)))
    b("s_barrier")
    for f in range(D):
        for r in reads(f):
            b(r)
            lg.issue(("A", f))

    fillers = []
    kalt = [0]

    def step(o, f, count):
        st, ks, n = order[f]
        q = 4 * st + ks
        o(vm.wait(("B", q)))
        o(lg.wait(("A", f)))
        rd = reads(f + D) if f + D < len(order) else []
        a = V_A + 4 * (f % NA)
        pre = []
        if rd and first_read[order[f + D][0]] == f + D:
            nst = order[f + D][0]
            pre.append(lambda: o(vm.wait(("D", nst))))
            pre.append(lambda: o("s_barrier"))
            if nst < 15:
                for ins in (f"s_add_u32 s{S_RSLOT}, s{S_RSLOT}, {STAGE}", f"s_cmp_eq_u32 s{S_RSLOT}, {4 * STAGE}",
                            f"s_cselect_b32 s{S_DELTA}, s{S_CWRAP}, s{S_CSTG}", f"s_cselect_b32 s{S_RSLOT}, 0, s{S_RSLOT}",
                            f"v_add_u32 v{V_LQ}, s{S_DELTA}, v{V_LQ}", f"v_add_u32 v{V_LG0}, s{S_DELTA}, v{V_LG0}",
                            f"v_add_u32 v{V_LG1}, s{S_DELTA}, v{V_LG1}"):
                    pre.append(lambda ins=ins: o(ins))
        fs = f % 40
        dm = dma(fs, wnt) if (st < 14 and fs < 10) else None
        for mm in range(2):
            bb = breg(q, mm)
            o(f"v_mfma_f32_32x32x16_bf16 {accr(n, mm)}, v[{a}:{a + 3}], v[{bb}:{bb + 3}], {accr(n, mm)}")
            count[0] += 1
            if mm == 0:
                for p in pre:
                    p()
                if dm:
                    o(dm[0])
            if rd:
                o(rd[mm])
                lg.issue(("A", f + D))
                count[0] += 1
            if mm == 0 and dm:
                o(dm[1])
                vm.issue(("D", st + 2))
            k = nfill
            while k > 0 and fillers and fillers[0][0] <= count[0]:
                it = fillers.pop(0)[1]
                o(it)
                if isinstance(it, str):
                    count[0] += 1
                    if it.startswith("buffer_store"):
                        vm.issue(("S", 0))
                else:
                    count[0] += 2
                k -= 1
        if st < 14 and fs == 10:
            o(dma_advance())
        if st < 14 and n == 9:
            for mm in range(2):
                o(bload(q + 8, mm, xnt))
                vm.issue(("B", q + 8))
            if q % 4 == 3:
                o(f"s_add_u32 s{S_OB0}, s{S_OB0}, 4096")
                o(f"s_add_u32 s{S_OB1}, s{S_OB1}, 4096")
        if st == 15 and ks == 3:
            for mm in range(2):
                for it in epilogue_ops(name, n, mm, kalt[0], stp):
                    fillers.append((count[0] + 13, it))
                kalt[0] ^= 1

    iters = []
    cnt = [0]
    for it in range(7):
        o = Block()
        for f in range(80 * it, 80 * it + 80):
            step(o, f, cnt)
        iters.append(o)
    b(".p2align 3")
    b.label(f"{name}_loop")
    b(merge_iterations(iters))
    b(f"s_sub_u32 s{S_CNT}, s{S_CNT}, 1")
    b(f"s_cmp_lg_u32 s{S_CNT}, 0")
    b(f"s_cbranch_scc1 {name}_loop")
    for f in range(560, len(order)):
        step(b, f, cnt)
    b("s_nop 12")
    for _, it in fillers:
        b(it)
    b.label(f"{name}_done")
    b("s_endpgm")
    return kernel_text(name, b, 512, 256, 96), (256, 256, 163840)
```

```python
from asmlib import *
from layout import *

STAGE = 16384
D = 7
NA = 8

V_DMA, V_L16, V_LR, V_XO = 10, 14, 16, 18
V_A, V_B, V_Y, V_SA, V_XX, V_T = 24, 56, 120, 152, 184, 200

S_WD, S_WO, S_HH, S_OO, S_X, S_OUT = 8, 12, 16, 20, 24, 28
S_W, S_MT, S_NT, S_M0, S_DSLOT, S_OW, S_OB, S_CNT, S_RSLOT, S_OB2 = 36, 37, 38, 39, 40, 41, 42, 43, 44, 45


def final_epilogue(b, ybase, sbase, xx, T, out_srd, v_xo, have_g=False):
    for t in range(2):
        Y, S, X = ybase + 16 * t, sbase + 16 * t, xx + 8 * t
        for g in range(2):
            b(f"v_permlane32_swap_b32 v{X + 4 * g}, v{X + 4 * g + 2}")
            b(f"v_permlane32_swap_b32 v{X + 4 * g + 1}, v{X + 4 * g + 3}")
        if not have_g:
            for r in range(16):
                b(f"v_mul_f32 v{T + r}, {f32(-math.log2(math.e))}, v{Y + r}")
            for r in range(16):
                b(f"v_exp_f32 v{T + r}, v{T + r}")
            for r in range(16):
                b(f"v_add_f32 v{T + r}, 1.0, v{T + r}")
            for r in range(16):
                b(f"v_rcp_f32 v{T + r}, v{T + r}")
            for r in range(16):
                b(f"v_mul_f32 v{Y + r}, v{Y + r}, v{T + r}")
        for r in range(8):
            b(f"v_lshlrev_b32 v{T + 2 * r}, 16, v{X + r}")
            b(f"v_and_b32 v{T + 2 * r + 1}, 0xffff0000, v{X + r}")
        for r in range(16):
            b(f"v_fmac_f32 v{T + r}, v{S + r}, v{Y + r}")
        for r in range(8):
            b(f"v_cvt_pk_bf16_f32 v{X + r}, v{T + 2 * r}, v{T + 2 * r + 1}")
        b("s_nop 1")
        for g in range(2):
            b(f"v_permlane32_swap_b32 v{X + 4 * g}, v{X + 4 * g + 2}")
            b(f"v_permlane32_swap_b32 v{X + 4 * g + 1}, v{X + 4 * g + 3}")
            b(f"buffer_store_dwordx4 {vr(X + 4 * g, 4)}, v{v_xo}, s[{out_srd}:{out_srd + 3}], 0 offen offset:{64 * t + 32 * g}")


def gen(name, opt):
    wnt = " nt" if opt.get("g2_wnt") else ""
    xm = opt.get("g2_xm", 4)
    gx, xn = 16 // xm, 32 // xm
    vm, lg = Queue("vmcnt", 63), Queue("lgkmcnt", 15)
    NST, NH = 36, 28
    b = Block()
    b("s_cmp_ge_u32 s2, 256")
    b(f"s_cbranch_scc1 {name}_done")
    b(f"s_load_dwordx2 s[4:5], s[0:1], {KA_X}")
    b(f"s_load_dwordx2 s[46:47], s[0:1], {KA_WO}")
    b(f"s_load_dwordx4 s[48:51], s[0:1], {KA_DOWN}")
    b(f"s_load_dwordx2 s[6:7], s[0:1], {KA_WS}")
    b("v_lshrrev_b32 v2, 6, v0")
    b("v_and_b32 v1, 63, v0")
    b("s_and_b32 s52, s2, 7")
    b(f"v_readfirstlane_b32 s{S_W}, v2")
    b("s_lshr_b32 s53, s2, 3")
    b(f"s_and_b32 s3, s52, {gx - 1}")
    b(f"s_mul_i32 s3, s3, {xm}")
    b(f"s_and_b32 s{S_MT}, s53, {xm - 1}")
    b(f"s_add_u32 s{S_MT}, s{S_MT}, s3")
    b(f"s_lshl_b32 s{S_MT}, s{S_MT}, 2")
    b(f"s_add_u32 s{S_MT}, s{S_MT}, s{S_W}")
    b(f"s_lshr_b32 s3, s52, {gx.bit_length() - 1}")
    b(f"s_mul_i32 s3, s3, {xn}")
    b(f"s_lshr_b32 s{S_NT}, s53, {xm.bit_length() - 1}")
    b(f"s_add_u32 s{S_NT}, s{S_NT}, s3")
    b(f"v_lshlrev_b32 v{V_L16}, 4, v1")
    b("v_lshrrev_b32 v3, 3, v1")
    b("v_and_b32 v4, 7, v1")
    b("v_bfe_u32 v5, v1, 4, 1")
    b("v_lshlrev_b32 v5, 2, v5")
    b("v_xor_b32 v4, v4, v5")
    b("v_lshlrev_b32 v3, 11, v3")
    b("v_lshl_add_u32 v3, v4, 4, v3")
    b(f"s_lshl_b32 s3, s{S_NT}, 7")
    b(f"s_lshl_b32 s54, s{S_W}, 16")
    b("s_add_u32 s3, s3, s54")
    b(f"v_add_u32 v{V_DMA}, s3, v3")
    for i in range(1, 4):
        b(f"v_add_u32 v{V_DMA + i}, {i * 16384}, v{V_DMA}")
    b(f"s_lshl_b32 s{S_M0}, s{S_W}, 12")
    b(f"s_mov_b32 s{S_DSLOT}, s{S_M0}")
    b(f"s_mov_b32 s{S_OW}, 0")
    b(f"s_mul_i32 s{S_OB}, s{S_MT}, {224 * 1024}")
    b(f"s_add_u32 s{S_OB2}, s{S_OB}, 4096")
    b("s_waitcnt lgkmcnt(0)")
    srd(b, S_WD, 48, 7 << 20)
    srd(b, S_HH, 6, 14 << 20, WS_H)
    srd(b, S_WO, 46, 2 << 20)
    srd(b, S_OO, 6, 4 << 20, WS_O)

    def dma(o, st, i):
        s = S_WD if st < NH else S_WO
        m = f"s_add_u32 m0, s{S_DSLOT}, {1024 * i}"
        l = f"buffer_load_dwordx4 v{V_DMA + i}, s[{s}:{s + 3}], s{S_OW} offen lds{wnt}"
        return m, l

    def dma_adv(o, st):
        if st + 1 == NH:
            o(f"s_mov_b32 s{S_OW}, 0")
        else:
            o(f"s_add_u32 s{S_OW}, s{S_OW}, {128 * 2048}")
        o(f"s_add_u32 s{S_DSLOT}, s{S_DSLOT}, {STAGE}")
        o(f"s_and_b32 s{S_DSLOT}, s{S_DSLOT}, 0xffff")

    def bload(o, q):
        st, ks = divmod(q, 8)
        s = S_HH if st < NH else S_OO
        r = V_B + 4 * (q % 16)
        so = S_OB if ks < 4 else S_OB2
        o(f"buffer_load_dwordx4 {vr(r, 4)}, v{V_L16}, s[{s}:{s + 3}], s{so} offen offset:{1024 * (ks % 4)}")
        vm.issue(("B", q))
        if ks == 7:
            if st + 1 == NH:
                o(f"s_lshl_b32 s{S_OB}, s{S_MT}, 16")
            else:
                o(f"s_add_u32 s{S_OB}, s{S_OB}, 8192")
            o(f"s_add_u32 s{S_OB2}, s{S_OB}, 4096")

    for st in range(2):
        for i in range(4):
            m, l = dma(b, st, i)
            b([m, "s_nop 0", l])
            vm.issue(("D", st))
        dma_adv(b, st)
        for ks in range(8):
            bload(b, 8 * st + ks)
    srd(b, S_X, 4, 4 << 20)
    srd(b, S_OUT, 50, 4 << 20)
    b("v_bfe_u32 v2, v1, 2, 2")
    b("v_lshrrev_b32 v3, 5, v1")
    b("v_lshl_add_u32 v2, v3, 2, v2")
    b("v_lshlrev_b32 v2, 7, v2")
    b("v_bfe_u32 v4, v1, 4, 1")
    b("v_lshl_add_u32 v2, v4, 5, v2")
    b("v_and_b32 v4, 3, v1")
    b("v_lshl_add_u32 v2, v4, 3, v2")
    b("v_bfe_u32 v4, v1, 3, 1")
    b(f"v_lshl_add_u32 v{V_LR + 2 + 2}, v4, 6, v2")
    b(f"v_xor_b32 v{V_LR + 3 + 2}, 64, v{V_LR + 2 + 2}")
    VB0, VB1 = V_LR + 4, V_LR + 5
    b(f"v_mov_b32 v{V_LR}, v{VB0}")
    b(f"v_mov_b32 v{V_LR + 1}, v{VB1}")
    b(f"s_mov_b32 s{S_RSLOT}, 0")
    b("v_and_b32 v4, 31, v1")
    b(f"s_lshl_b32 s3, s{S_MT}, 5")
    b("v_add_u32 v4, s3, v4")
    b("v_lshlrev_b32 v4, 11, v4")
    b("v_lshl_add_u32 v4, v3, 4, v4")
    b(f"s_lshl_b32 s3, s{S_NT}, 7")
    b(f"v_add_u32 v{V_XO}, s3, v4")
    for r in range(64):
        b(f"v_mov_b32 v{V_Y + r}, 0")

    NF = NST * 16

    def reads(f):
        ks, t = (f % 16) // 2, f % 2
        r = V_A + 4 * (f % NA)
        return [f"ds_read_b64_tr_b16 {vr(r + 2 * p, 2)}, v{V_LR + t} offset:{2048 * ks + 1024 * p}" for p in range(2)]

    b(vm.wait(("D", 0)))
    b("s_barrier")
    for f in range(D):
        for r in reads(f):
            b(r)
            lg.issue(("A", f))

    def step(o, f):
        st, ks, t = f // 16, (f % 16) // 2, f % 2
        q = 8 * st + ks
        o(vm.wait(("B", q)))
        o(lg.wait(("A", f)))
        a, bb = V_A + 4 * (f % NA), V_B + 4 * (q % 16)
        c = vr((V_Y if st < NH else V_SA) + 16 * t, 16)
        o(f"v_mfma_f32_32x32x16_bf16 {c}, {vr(a, 4)}, {vr(bb, 4)}, {c}")
        if f + D < NF:
            if (f + D) % 16 == 0:
                o(vm.wait(("D", st + 1)))
                o("s_barrier")
                o(f"s_add_u32 s{S_RSLOT}, s{S_RSLOT}, {STAGE}")
                o(f"s_and_b32 s{S_RSLOT}, s{S_RSLOT}, 0xffff")
                o(f"v_add_u32 v{V_LR}, s{S_RSLOT}, v{VB0}")
                o(f"v_add_u32 v{V_LR + 1}, s{S_RSLOT}, v{VB1}")
            dm = dma(o, st + 2, f % 16) if (f % 16 < 4 and st + 2 < NST) else None
            if dm:
                o(dm[0])
            for r in reads(f + D):
                o(r)
                lg.issue(("A", f + D))
            if dm:
                o(dm[1])
                vm.issue(("D", st + 2))
                if f % 16 == 3:
                    dma_adv(o, st + 2)
        if t == 1 and q + 16 < 8 * NST:
            bload(o, q + 16)
        if f == 16 * (NST - 2):
            for t2 in range(2):
                for g in range(2):
                    o(f"buffer_load_dwordx4 {vr(V_XX + 8 * t2 + 4 * g, 4)}, v{V_XO}, s[{S_X}:{S_X + 3}], 0 offen offset:{64 * t2 + 32 * g}")
                    vm.issue("X")

    def loop(lbl, st0, n):
        iters = []
        for it in range(n):
            o = Block()
            for f in range(16 * (st0 + 2 * it), 16 * (st0 + 2 * it + 2)):
                step(o, f)
            iters.append(o)
        b(f"s_mov_b32 s{S_CNT}, {n}")
        b(".p2align 3")
        b.label(lbl)
        b(merge_iterations(iters))
        b(f"s_sub_u32 s{S_CNT}, s{S_CNT}, 1")
        b(f"s_cmp_lg_u32 s{S_CNT}, 0")
        b(f"s_cbranch_scc1 {lbl}")

    loop(f"{name}_loop1", 0, 12)
    for f in range(16 * 24, 16 * 28):
        step(b, f)
    loop(f"{name}_loop2", 28, 3)
    for f in range(16 * 34, NF):
        step(b, f)
    b(vm.wait("X"))
    b("s_nop 10")
    final_epilogue(b, V_Y, V_SA, V_XX, V_T, S_OUT, V_XO)
    b.label(f"{name}_done")
    b("s_endpgm")
    return kernel_text(name, b, 256, 256, 64), (256, 256, 65536)
```

```python
from asmlib import *
from layout import *


def xlane_sum(b, v, t):
    b("s_nop 1")
    b(f"v_add_f32_dpp v{v}, v{v}, v{v} row_ror:8 row_mask:0xf bank_mask:0xf")
    for swap in ("v_permlane16_swap_b32", "v_permlane32_swap_b32"):
        b(f"v_mov_b32 v{t}, v{v}")
        b("s_nop 1")
        b(f"{swap} v{v}, v{t}")
        b(f"v_add_f32 v{v}, v{v}, v{t}")


def gen(name, opt):
    b = Block()
    nt = " nt" if opt.get("ln_nt") else ""
    b("s_cmp_ge_u32 s2, 256")
    b(f"s_cbranch_scc1 {name}_done")
    b(f"s_load_dwordx2 s[4:5], s[0:1], {KA_X}")
    b(f"s_load_dwordx2 s[6:7], s[0:1], {KA_WS}")
    b("v_and_b32 v1, 7, v0")
    b("v_bfe_u32 v2, v0, 3, 3")
    b("v_lshrrev_b32 v3, 6, v0")
    b("s_lshl_b32 s3, s2, 14")
    b("v_lshlrev_b32 v4, 11, v1")
    b("v_lshl_add_u32 v4, v2, 4, v4")
    b("v_lshl_add_u32 v4, v3, 9, v4")
    b("s_lshr_b32 s20, s2, 2")
    b("s_lshl_b32 s20, s20, 16")
    b("s_and_b32 s21, s2, 3")
    b("s_lshl_b32 s21, s21, 7")
    b("s_add_u32 s20, s20, s21")
    b("s_add_u32 s21, s20, 4096")
    b("s_add_u32 s22, s20, 8192")
    b("s_add_u32 s23, s20, 12288")
    b("v_lshlrev_b32 v5, 4, v1")
    b("v_lshl_add_u32 v5, v2, 9, v5")
    b("v_lshl_add_u32 v5, v3, 14, v5")
    b("v_lshlrev_b32 v6, 5, v1")
    b("v_lshl_add_u32 v7, v3, 3, v6")
    b("s_waitcnt lgkmcnt(0)")
    srd(b, 8, 4, 4 << 20)
    srd(b, 12, 6, 4 << 20, WS_XN)
    for i in range(4):
        b(f"buffer_load_dwordx4 v[{16 + 4 * i}:{19 + 4 * i}], v4, s[8:11], s3 offen offset:{128 * i}{nt}")
    for i in range(4):
        b(f"s_waitcnt vmcnt({3 - i})")
        for d in range(4):
            b(f"v_lshlrev_b32 v{32 + 8 * i + 2 * d}, 16, v{16 + 4 * i + d}")
            b(f"v_and_b32 v{33 + 8 * i + 2 * d}, 0xffff0000, v{16 + 4 * i + d}")
        b(f"v_add_f32 v{8 + i}, v{32 + 8 * i}, v{33 + 8 * i}")
        for d in range(2, 8):
            b(f"v_add_f32 v{8 + i}, v{8 + i}, v{32 + 8 * i + d}")
    b("v_add_f32 v8, v8, v9")
    b("v_add_f32 v10, v10, v11")
    b("v_add_f32 v8, v8, v10")
    xlane_sum(b, 8, 9)
    b("v_mul_f32 v8, 0x3b800000, v8")
    for r in range(32, 64):
        b(f"v_sub_f32 v{r}, v{r}, v8")
    for c in range(4):
        b(f"v_mul_f32 v{10 + c}, v{32 + c}, v{32 + c}")
    for r in range(36, 64):
        b(f"v_fmac_f32 v{10 + (r & 3)}, v{r}, v{r}")
    b("v_add_f32 v10, v10, v11")
    b("v_add_f32 v12, v12, v13")
    b("v_add_f32 v9, v10, v12")
    xlane_sum(b, 9, 10)
    b("ds_write_b64 v7, v[8:9]")
    b("s_waitcnt lgkmcnt(0)")
    b("s_barrier")
    b("ds_read_b128 v[16:19], v6")
    b("ds_read_b128 v[20:23], v6 offset:16")
    b("s_waitcnt lgkmcnt(0)")
    b("v_add_f32 v10, v16, v18")
    b("v_add_f32 v11, v20, v22")
    b("v_add_f32 v10, v10, v11")
    b("v_mul_f32 v10, 0x3e800000, v10")
    b("v_add_f32 v11, v17, v19")
    b("v_add_f32 v12, v21, v23")
    b("v_add_f32 v11, v11, v12")
    for r in (16, 18, 20, 22):
        b(f"v_sub_f32 v{r}, v{r}, v10")
    b("v_mul_f32 v12, v16, v16")
    for r in (18, 20, 22):
        b(f"v_fmac_f32 v12, v{r}, v{r}")
    b("v_fmac_f32 v11, 0x43800000, v12")
    b(f"v_mov_b32 v13, {f32(1e-5)}")
    b("v_fmac_f32 v13, 0x3a800000, v11")
    b("v_rsq_f32 v13, v13")
    b("v_sub_f32 v14, v8, v10")
    b("v_mul_f32 v14, v14, v13")
    so = ["s20", "s21", "s22", "s23"]
    for i in range(4):
        for r in range(8):
            b(f"v_fma_f32 v{32 + 8 * i + r}, v{32 + 8 * i + r}, v13, v14")
        for d in range(4):
            b(f"v_cvt_pk_bf16_f32 v{16 + 4 * i + d}, v{32 + 8 * i + 2 * d}, v{33 + 8 * i + 2 * d}")
        b(f"buffer_store_dwordx4 v[{16 + 4 * i}:{19 + 4 * i}], v5, s[12:15], {so[i]} offen")
    b.label(f"{name}_done")
    b("s_endpgm")
    return kernel_text(name, b, 64, 64, 32), (256, 256, 256)
```

```python
import math
import struct

KA_X, KA_WQKV, KA_WO, KA_BX, KA_GATE, KA_UP, KA_DOWN, KA_OUT, KA_DBG, KA_WS = range(0, 80, 8)

WS_XN = 0
WS_QKV = 4 << 20
WS_H = 16 << 20
WS_O = 32 << 20
WS_G = 36 << 20

QSCALE = math.log2(math.e) / math.sqrt(32.0)


def f32(x):
    return "0x%08x" % struct.unpack("<I", struct.pack("<f", x))[0]


def magic(d, limit, shift=16):
    m = (1 << shift) // d + 1
    assert all((u * m) >> shift == u // d for u in range(limit)), (d, limit)
    assert m * limit < (1 << 32)
    return m
```

```python
import sys, importlib
sys.path.insert(0, "dev")
import k_ln, k_gemm1, k_attn, k_gemm2

HEADER = open("recurrent_scan__mha_block__glu_gated_reglu__prompt.s.ref").read().split("; Override launch")[0]

def build(opt=None, kernels=None):
    opt = opt or {}
    ks = kernels or [("ln_kernel", k_ln), ("gemm1_kernel", k_gemm1), ("attn_kernel", k_attn), ("gemm2_kernel", k_gemm2)]
    launches, text = "", ""
    for name, mod in ks:
        t, (grid, block, lds) = mod.gen(name, opt)
        launches += f"; @launch kernel={name} grid=({grid},1,1) block=({block},1,1) lds={lds}\n"
        text += t
    return HEADER + launches + '.amdgcn_target "amdgcn-amd-amdhsa--gfx950"\n' + text

if __name__ == "__main__":
    out = sys.argv[1] if len(sys.argv) > 1 else "recurrent_scan__mha_block__glu_gated_reglu__prompt.s"
    opt = {}
    for a in sys.argv[2:]:
        k, v = a.split("=")
        opt[k] = int(v) if v.lstrip("-").isdigit() else v
    open(out, "w").write(build(opt))
```
